```python
import torch

def _softmax(x, axis=-1):
    return torch.softmax(x, dim=axis)
def _gelu(x):
    return torch.nn.functional.gelu(x, approximate="tanh")
def _silu(x):
    return torch.nn.functional.silu(x)
def _sigmoid(x):
    return torch.sigmoid(x)
def _layernorm(x, axis=-1, eps=1e-5):
    m = x.mean(dim=axis, keepdim=True)
    v = x.var(dim=axis, keepdim=True, unbiased=False)
    return (x - m) / torch.sqrt(v + eps)
def _scatter_add(tgt, idx, src, axis=0):
    return tgt.clone().index_add_(axis, idx, src)
def _segment_sum(src, seg, n):
    out = torch.zeros((n,) + src.shape[1:], dtype=src.dtype)
    return out.index_add_(0, seg, src)
def _pad(x, pw):
    flat = tuple(v for pair in reversed(pw) for v in pair)
    return torch.nn.functional.pad(x, flat)

kernel_name = 'concat_heads__ssm_conv_s4__softmax_full_mha__prompt'

def setup_inputs():

    _w = (lambda a: (lambda t: t.to(torch.bfloat16) if t.is_floating_point() else t)(torch.as_tensor(a)))
    def _A_setup():
        B, L, D, N = 1, 2048, 448, 256
        A_re = -(lambda _x: torch.exp(torch.as_tensor(_x)))((lambda *s: torch.randn(*s, dtype=torch.bfloat16) * 3.2)(D, N))
        A_im = torch.pi * (lambda *s: torch.randn(*s, dtype=torch.bfloat16) * 0.05)(D, N)
        B_re = (lambda *s: torch.randn(*s, dtype=torch.bfloat16) * 0.2)(D, N)
        B_im = (lambda *s: torch.randn(*s, dtype=torch.bfloat16) * 0.2)(D, N)
        C_re = (lambda *s: torch.randn(*s, dtype=torch.bfloat16) * 0.2)(D, N)
        C_im = (lambda *s: torch.randn(*s, dtype=torch.bfloat16) * 0.2)(D, N)
        log_dt = (lambda *s: torch.randn(*s, dtype=torch.bfloat16) * 0.05)(D) * 0.5 - 4.0
        Dskip = (lambda *s: torch.randn(*s, dtype=torch.bfloat16) * 0.1)(D)
        return {
            "u": _w((lambda *s: torch.randn(*s, dtype=torch.bfloat16) * 0.05)(B, L, D)),
            "A_re": _w(A_re),
            "A_im": _w(A_im),
            "B_re": _w(B_re),
            "B_im": _w(B_im),
            "C_re": _w(C_re),
            "C_im": _w(C_im),
            "log_dt": _w(log_dt),
            "Dskip": _w(Dskip),
        }
    _A_in = _A_setup()

    def _B_setup():
        B, S, D = 1, 2048, 448
        return {
            "x": _w((lambda *s: torch.randn(*s, dtype=torch.bfloat16) * 0.2)(B, S, D)),
            "wqkv": _w((lambda *s: torch.randn(*s, dtype=torch.bfloat16) * 0.2)(D, 3 * D)),
            "wo": _w((lambda *s: torch.randn(*s, dtype=torch.bfloat16) * 0.05)(D, D)),
        }
    _B_in = _B_setup()

    return {
        "A_u": _A_in["u"],
        "A_A_re": _A_in["A_re"],
        "A_A_im": _A_in["A_im"],
        "A_B_re": _A_in["B_re"],
        "A_B_im": _A_in["B_im"],
        "A_C_re": _A_in["C_re"],
        "A_C_im": _A_in["C_im"],
        "A_log_dt": _A_in["log_dt"],
        "A_Dskip": _A_in["Dskip"],
        "B_x": _B_in["x"],
        "B_wqkv": _B_in["wqkv"],
        "B_wo": _B_in["wo"],
    }

def reference(A_u, A_A_re, A_A_im, A_B_re, A_B_im, A_C_re, A_C_im, A_log_dt, A_Dskip, B_x, B_wqkv, B_wo):
    def _A_ref(u, A_re, A_im, B_re, B_im, C_re, C_im, log_dt, Dskip):
        Bsz, L, D = u.shape
        dt = torch.exp(log_dt)[:, None]
        A = A_re + 1j * A_im
        Bc = B_re + 1j * B_im
        Cc = C_re + 1j * C_im
        logdA = dt * A
        dB = dt * Bc
        l = (lambda x, dt: x.to(dt))(torch.arange(L), A_re.dtype)
        P = torch.exp(logdA[:, :, None] * l[None, None, :])
        K = torch.einsum("dn,dnl,dn->dl", Cc, P, dB).real
        L2 = 2 * L
        Kp = _pad(K, ((0, 0), (0, L)))
        up = (lambda x, *d: x.permute(*d))(u, 0, 2, 1)
        up = _pad(up, ((0, 0), (0, 0), (0, L)))
        Kf = (lambda x, axes=(-2,-1): torch.fft.rfft2(x.float(), dim=axes))(Kp[:, None, :], axes=(-2, -1))
        Uf = (lambda x, axes=(-2,-1): torch.fft.rfft2(x.float(), dim=axes))(up[:, :, None, :], axes=(-2, -1))
        Yf = Uf * Kf[None, :, :, :]
        y = (lambda x, s, axes=(-2,-1): torch.fft.irfft2(x, s=s, dim=axes).to(torch.bfloat16))(Yf, (1, L2), axes=(-2, -1))[:, :, 0, :L]
        y = (lambda x, *d: x.permute(*d))(y, 0, 2, 1) + u * Dskip[None, None, :]
        return y

    def _B_ref(x, wqkv, wo):
        B, S, D = x.shape
        H = 16; Dh = D // H
        qkv = (lambda x, *d: x.permute(*d))((x @ wqkv).reshape(B, S, 3, H, Dh), 2, 0, 3, 1, 4)
        q, k, v = qkv[0], qkv[1], qkv[2]
        scale = Dh ** -0.5
        scores = torch.einsum("bhqd,bhkd->bhqk", q, k) * scale
        p = _softmax(scores, axis=-1)
        o = torch.einsum("bhqk,bhkd->bhqd", p, v)
        return (lambda x, *d: x.permute(*d))(o, 0, 2, 1, 3).reshape(B, S, D) @ wo

    a = _A_ref(A_u, A_A_re, A_A_im, A_B_re, A_B_im, A_C_re, A_C_im, A_log_dt, A_Dskip)
    b = _B_ref(B_x, B_wqkv, B_wo)
    return torch.concatenate([a, b], axis=-1)
```

```python
import re

SB = 1000
VCC = {SB + 106, SB + 107}
EXEC = {SB + 126, SB + 127}
M0 = SB + 124
SCC = 2000


class Reg:
    def __init__(self, kind, base, n=1):
        self.kind, self.base, self.n = kind, base, n

    def __str__(self):
        if self.n == 1:
            return "%s%d" % (self.kind, self.base)
        return "%s[%d:%d]" % (self.kind, self.base, self.base + self.n - 1)

    __repr__ = __str__

    def __format__(self, spec):
        return str(self)

    def __getitem__(self, i):
        if isinstance(i, slice):
            a = i.start or 0
            b = self.n if i.stop is None else i.stop
            assert 0 <= a < b <= self.n, (a, b, self.n)
            return Reg(self.kind, self.base + a, b - a)
        assert 0 <= i < self.n, (i, self.n)
        return Reg(self.kind, self.base + i, 1)

    def __len__(self):
        return self.n


class RA:
    def __init__(self, kind, lo, hi):
        self.kind, self.lo, self.hi = kind, lo, hi
        self.used = set()
        self.maxused = lo - 1

    def alloc(self, n=1, align=None):
        if align is None:
            align = 1 if n == 1 else (2 if self.kind == "v" else (2 if n == 2 else 4))
        b = self.lo
        while True:
            b = (b + align - 1) // align * align
            assert b + n <= self.hi, "out of %s registers" % self.kind
            if all((b + i) not in self.used for i in range(n)):
                break
            b += 1
        for i in range(n):
            self.used.add(b + i)
        self.maxused = max(self.maxused, b + n - 1)
        return Reg(self.kind, b, n)

    def free(self, *regs):
        for r in regs:
            for i in range(r.n):
                self.used.discard(r.base + i)


def split_ops(s):
    out, depth, cur = [], 0, ""
    for ch in s:
        if ch in "[(":
            depth += 1
        elif ch in "])":
            depth -= 1
        if ch == "," and depth == 0:
            out.append(cur.strip())
            cur = ""
        else:
            cur += ch
    if cur.strip():
        out.append(cur.strip())
    return out


_R1 = re.compile(r"^([vsa])(\d+)$")
_RN = re.compile(r"^([vsa])\[(\d+):(\d+)\]$")


def regset(tok):
    t = tok.strip()
    t = t.lstrip("-")
    if t.startswith("abs(") and t.endswith(")"):
        t = t[4:-1]
    t = t.strip("|")
    if t == "vcc":
        return set(VCC)
    if t == "vcc_lo":
        return {SB + 106}
    if t == "vcc_hi":
        return {SB + 107}
    if t == "exec":
        return set(EXEC)
    if t == "exec_lo":
        return {SB + 126}
    if t == "exec_hi":
        return {SB + 127}
    if t == "m0":
        return {M0}
    m = _R1.match(t)
    if m:
        k, a = m.group(1), int(m.group(2))
        b = a
    else:
        m = _RN.match(t)
        if not m:
            return set()
        k, a, b = m.group(1), int(m.group(2)), int(m.group(3))
    off = {"v": 0, "a": 512, "s": SB}[k]
    return set(range(off + a, off + b + 1))


TRANS = re.compile(r"^v_(exp|log|rcp|rsq|sqrt|sin|cos)_")
NO_SDEF = ("s_cmp", "s_waitcnt", "s_branch", "s_cbranch", "s_barrier", "s_nop", "s_endpgm",
           "s_setprio", "s_bitcmp", "s_sleep", "s_sethalt", "s_setreg")


def isv(r):
    return r < SB


class Ins:
    def __init__(self, text, tag=None):
        self.text = text.strip()
        self.tag = tag
        self.label = None
        self.need = None
        code = self.text.split(";")[0].strip()
        parts = code.split(None, 1)
        self.mn = mn = parts[0]
        rest = parts[1] if len(parts) > 1 else ""
        raw = split_ops(rest)
        self.ops = []
        mods = []
        for i, p in enumerate(raw):
            w = p.split()
            self.ops.append(w[0])
            mods += w[1:]
        self.mods = mods
        ops = self.ops
        R = [regset(o) for o in ops]
        d, u = set(), set()
        self.mfma = mn.startswith("v_mfma") or mn.startswith("v_smfmac")
        self.valu = mn.startswith("v_") and not self.mfma
        self.trans = bool(TRANS.match(mn))
        self.salu = mn.startswith("s_") and not mn.startswith("s_load") and not mn.startswith("s_memtime")
        self.smem = mn.startswith("s_load") or mn.startswith("s_memtime") or mn.startswith("s_memrealtime")
        if self.smem:
            self.salu = False
        self.ds = mn.startswith("ds_")
        self.vmem = mn.startswith("buffer_") or mn.startswith("global_")
        self.dma = False
        self.cuse, self.abuse = set(), set()
        self.store_data = set()
        self.passes = 0
        self.states = 1
        self.branch = None
        self.uncond = False
        self.readlane = mn.startswith("v_readfirstlane") or mn.startswith("v_readlane")
        self.permlane = mn.startswith("v_permlane")
        self.dpp = any(m.startswith(("row_", "quad_perm", "wave_", "row_bcast")) for m in mods) or mn.endswith("_dpp")
        self.dstsel = False
        if self.mfma:
            if "32x32" in mn:
                self.passes = 8
            elif "16x16" in mn:
                self.passes = 4
            else:
                raise ValueError(mn)
            d |= R[0]
            if mn.startswith("v_smfmac"):
                self.cuse = set(R[0])
                self.abuse = R[1] | R[2] | R[3]
            else:
                self.cuse = set(R[3])
                self.abuse = R[1] | R[2]
            u |= self.cuse | self.abuse
        elif self.valu:
            if mn.startswith("v_nop"):
                pass
            elif mn.startswith("v_cmpx"):
                raise ValueError("avoid v_cmpx")
            elif mn.startswith("v_permlane") and "swap" in mn:
                d |= R[0] | R[1]
                u |= R[0] | R[1]
            elif re.match(r"v_(add|sub|subrev)_co_u32|v_(addc|subb|subbrev)_co_u32|v_mad_u64_u32|v_div_scale", mn):
                d |= R[0] | R[1]
                for r in R[2:]:
                    u |= r
            else:
                d |= R[0]
                for r in R[1:]:
                    u |= r
                if re.match(r"v_(fmac|pk_fmac|dot\w*c|writelane|mac)", mn):
                    u |= R[0]
                if mn.startswith("v_cndmask") and len(ops) == 3:
                    u |= VCC
                if any(m.startswith("dst_sel") and "DWORD" not in m for m in mods):
                    self.dstsel = True
                    u |= R[0]
        elif self.ds:
            if mn.startswith(("ds_read", "ds_bpermute", "ds_permute", "ds_swizzle")) or "_rtn" in mn:
                d |= R[0]
                for r in R[1:]:
                    u |= r
            else:
                for r in R:
                    u |= r
        elif self.vmem:
            if mn.startswith(("buffer_wbl2", "buffer_inv")):
                pass
            elif "lds" in mods or mn.startswith("global_load_lds"):
                self.dma = True
                for r in R:
                    u |= r
                u.add(M0)
            elif "_load" in mn:
                d |= R[0]
                for r in R[1:]:
                    u |= r
            elif "_store" in mn:
                for r in R:
                    u |= r
                if mn.endswith(("x3", "x4")):
                    self.store_data = R[0] if mn.startswith("buffer") else R[1]
            elif "_atomic" in mn:
                if "sc0" in mods:
                    d |= R[0]
                for r in R:
                    u |= r
            else:
                raise ValueError(mn)
        elif self.smem:
            d |= R[0]
            for r in R[1:]:
                u |= r
        elif self.salu:
            if mn == "s_nop":
                self.states = int(ops[0], 0) + 1
            elif mn.startswith(("s_branch", "s_cbranch")):
                self.branch = ops[0]
                self.uncond = mn == "s_branch"
            elif mn.startswith(NO_SDEF):
                for r in R:
                    u |= r
            else:
                d |= R[0]
                for r in R[1:]:
                    u |= r
                if "saveexec" in mn:
                    d |= EXEC
                if mn.startswith(("s_addk", "s_mulk", "s_cmov", "s_bitset")):
                    u |= R[0]
        else:
            raise ValueError("unknown instr: " + text)
        self.d, self.u = d, u
        self.vd = {r for r in d if isv(r)}
        self.vu = {r for r in u if isv(r)}
        self.sd = d - self.vd
        self.su = u - self.vu


class Label:
    def __init__(self, name):
        self.name = name


class Need:
    def __init__(self, tags):
        self.tags = tags


def hz(P, I):
    n = 0
    if P.valu:
        if P.vd:
            if I.mfma and (P.vd & I.vu):
                n = max(n, 2)
            if I.valu:
                if P.trans and not I.trans and (P.vd & I.vu):
                    n = max(n, 1)
                if I.readlane and (P.vd & I.vu):
                    n = max(n, 1)
                if (I.permlane or I.dpp) and (P.vd & I.vu):
                    n = max(n, 2)
                if P.dstsel and (P.vd & (I.vu | I.vd)):
                    n = max(n, 1)
            if P.trans and (I.vmem or I.ds) and (P.vd & I.vu):
                n = max(n, 1)
        if P.sd:
            if (I.valu or I.mfma) and (P.sd & I.su):
                n = max(n, 4 if (I.readlane or "writelane" in I.mn or "div_fmas" in I.mn) else 2)
            if I.vmem and (P.sd & I.su):
                n = max(n, 5)
            if (I.salu or I.smem) and (P.sd & I.su):
                n = max(n, 1)
    elif P.mfma:
        p = P.passes
        if I.mfma:
            if P.vd & I.cuse:
                if not (P.vd == I.cuse and p == I.passes):
                    n = max(n, {4: 6, 8: 10}[p])
            if P.vd & I.abuse:
                n = max(n, {4: 8, 8: 12}[p])
            if (P.vd & I.vd) and p != I.passes:
                n = max(n, {4: 6, 8: 10}[p])
        elif I.valu or I.vmem or I.ds:
            if P.vd & (I.vu | I.vd):
                n = max(n, {4: 8, 8: 12}[p])
            if I.valu and (P.cuse & I.vd):
                n = max(n, {4: 3, 8: 7}[p])
    elif P.salu:
        if M0 in P.sd and (I.dma or "addtid" in I.mn):
            n = max(n, 1)
    if P.store_data and (P.store_data & I.vd):
        n = max(n, 2 if (I.valu or I.mfma) else 1)
    return n


class Kernel:
    def __init__(self, name):
        self.name = name
        self.items = []
        self.nlab = 0

    def __call__(self, text, tag=None):
        for line in text.strip().split("\n"):
            line = line.strip()
            if not line or line.startswith(";"):
                continue
            self.items.append(Ins(line, tag))

    def label(self, name):
        self.items.append(Label(name))

    def newlabel(self, base="L"):
        self.nlab += 1
        return "%s_%s%d" % (self.name[:2], base, self.nlab)

    def need(self, *tags):
        self.items.append(Need(set(tags)))

    def _succ(self, items, labs, i):
        it = items[i]
        if isinstance(it, Ins):
            if it.mn == "s_endpgm":
                return []
            if it.branch is not None:
                t = labs[it.branch]
                return [t] if it.uncond else [i + 1, t]
        return [i + 1]

    def insert_waits(self):
        items = self.items
        labs = {it.name: i for i, it in enumerate(items) if isinstance(it, Label)}
        waits = {}

        def apply(vm, lg, w):
            if w[0] is not None and len(vm) > w[0]:
                vm = vm[len(vm) - w[0]:] if w[0] else ()
            if w[1] is not None and len(lg) > w[1]:
                if any(e[2] for e in lg) and w[1] > 0:
                    pass
                else:
                    lg = lg[len(lg) - w[1]:] if w[1] else ()
            return vm, lg

        changed = True
        while changed:
            changed = False
            seen = set()
            work = [(0, (), ())]
            while work and not changed:
                i, vm, lg = work.pop()
                while True:
                    it = items[i]
                    if isinstance(it, Label):
                        key = (i, vm, lg)
                        if key in seen:
                            break
                        seen.add(key)
                        assert len(seen) < 200000, "state explosion"
                        i += 1
                        continue
                    if i in waits:
                        vm, lg = apply(vm, lg, waits[i])
                    rv = rl = None
                    if isinstance(it, Need):
                        for k, e in enumerate(vm):
                            if e[1] in it.tags:
                                rv = len(vm) - 1 - k
                        for k, e in enumerate(lg):
                            if e[1] in it.tags:
                                rl = len(lg) - 1 - k
                    else:
                        touch = it.u | it.d
                        for k, e in enumerate(vm):
                            t = it.u if (it.vmem and not it.dma) else touch
                            if e[0] & t:
                                rv = len(vm) - 1 - k
                        for k, e in enumerate(lg):
                            t = it.u if (it.ds and not e[2]) else touch
                            if e[0] & t:
                                rl = len(lg) - 1 - k
                    if rl is not None and any(e[2] for e in lg):
                        rl = 0
                    if rv is not None or rl is not None:
                        old = waits.get(i, (None, None))
                        new = (rv if old[0] is None else (old[0] if rv is None else min(rv, old[0])),
                               rl if old[1] is None else (old[1] if rl is None else min(rl, old[1])))
                        new = (None if new[0] is None else min(new[0], 63), None if new[1] is None else min(new[1], 15))
                        assert new != old
                        if i in waits:
                            changed = True
                        waits[i] = new
                        vm, lg = apply(vm, lg, new)
                        if changed:
                            break
                    if isinstance(it, Need):
                        i += 1
                        continue
                    if it.mn == "s_waitcnt":
                        m = re.search(r"vmcnt\((\d+)\)", it.text)
                        m2 = re.search(r"lgkmcnt\((\d+)\)", it.text)
                        vm, lg = apply(vm, lg, (int(m.group(1)) if m else None, int(m2.group(1)) if m2 else None))
                    elif it.vmem:
                        vm = (vm + ((frozenset(it.d), it.tag, False),))[-63:]
                    elif it.ds:
                        lg = lg + ((frozenset(it.d), it.tag, False),)
                        if len(lg) > 15 and not any(e[2] for e in lg):
                            pass
                        lg = lg[-64:]
                    elif it.smem:
                        lg = lg + ((frozenset(it.d), it.tag, True),)
                    s = self._succ(items, labs, i)
                    if not s:
                        break
                    for t in s[1:]:
                        work.append((t, vm, lg))
                    i = s[0]
        out = []
        for i, it in enumerate(items):
            if i in waits:
                w = waits[i]
                t = "s_waitcnt"
                if w[0] is not None:
                    t += " vmcnt(%d)" % w[0]
                if w[1] is not None:
                    t += " lgkmcnt(%d)" % w[1]
                out.append(Ins(t))
            if not isinstance(it, Need):
                out.append(it)
        self.items = out

    def insert_nops(self):
        items = self.items
        labs = {it.name: i for i, it in enumerate(items) if isinstance(it, Label)}
        preds = {i: [] for i in range(len(items) + 1)}
        for i in range(len(items)):
            for t in self._succ(items, labs, i):
                preds[t].append(i)
        pad = {}
        W = 20
        for i, it in enumerate(items):
            if not isinstance(it, Ins):
                continue
            if not (it.valu or it.mfma or it.vmem or it.ds or it.salu or it.smem):
                continue
            best = 0
            stack = [(p, 0) for p in preds[i]]
            seen = {}
            while stack:
                j, dist = stack.pop()
                if dist >= W or seen.get(j, 99) <= dist:
                    continue
                seen[j] = dist
                P = items[j]
                nd = dist
                if isinstance(P, Ins):
                    n = hz(P, it)
                    if n - dist > best:
                        best = n - dist
                    nd = dist + P.states + pad.get(j, 0)
                for p in preds[j]:
                    stack.append((p, nd))
            if best > 0:
                pad[i] = best
        out = []
        self.nnops = 0
        for i, it in enumerate(items):
            n = pad.get(i, 0)
            while n > 0:
                k = min(n, 16)
                out.append(Ins("s_nop %d" % (k - 1)))
                self.nnops += 1
                n -= k
            out.append(it)
        self.items = out

    def finish(self):
        self.insert_waits()
        self.insert_nops()
        mv = ms = 0
        for it in self.items:
            if isinstance(it, Ins):
                for r in it.d | it.u:
                    if r < 512:
                        mv = max(mv, r + 1)
                    elif SB <= r < SB + 102:
                        ms = max(ms, r - SB + 1)
        self.nv, self.ns = mv, ms
        s = ".p2align 8\n.type %s,@function\n%s:\n" % (self.name, self.name)
        for it in self.items:
            if isinstance(it, Label):
                s += it.name + ":\n"
            else:
                s += "    " + it.text + "\n"
        return s

    def descriptor(self):
        nv = max(8, (self.nv + 7) // 8 * 8)
        return """.p2align 6
.amdhsa_kernel %s
  .amdhsa_next_free_vgpr %d
  .amdhsa_next_free_sgpr %d
  .amdhsa_accum_offset %d
  .amdhsa_group_segment_fixed_size 0
  .amdhsa_kernarg_size 120
  .amdhsa_user_sgpr_count 2
  .amdhsa_user_sgpr_kernarg_segment_ptr 1
  .amdhsa_system_sgpr_workgroup_id_x 1
.end_amdhsa_kernel
""" % (self.name, nv, max(self.ns, 16), nv)


def build_file(header, kernels):
    s = header
    for k, g, b, lds in kernels:
        s += "; @launch kernel=%s grid=(%d,1,1) block=(%d,1,1) lds=%d\n" % (k.name, g, b, lds)
    s += '.amdgcn_target "amdgcn-amd-amdhsa--gfx950"\n.text\n'
    done = []
    for k, g, b, lds in kernels:
        if k in done:
            continue
        done.append(k)
        s += ".globl %s\n" % k.name
        s += k.finish()
    s += '.section .rodata,"a"\n'
    for k in done:
        s += k.descriptor()
    return s
```

```python
import sys, struct, math
sys.path.insert(0, "dev")
from asmgen import *
from gen import QF, KVF, OF, KT, YT, WS_SIZE, f32, srd, S

K2_R = 0
K2_C = 49152
KE, KO, UR, TB = 0, 4160, 8320, 12928
CHS = 14464
K2_F = K2_C + 2 * CHS
K2_LDS = K2_F + 256


def gen_k2(opts):
    k = Kernel("k2_kernel")
    st = opts.get("st2", "")
    sty = opts.get("sty", "")
    k("s_cmp_ge_u32 s2, 256")
    k("s_cbranch_scc1 k2_end")
    k("s_load_dwordx2 s[16:17], s[0:1], 0")
    k("s_load_dwordx2 s[18:19], s[0:1], 112")
    V = RA("v", 1, 256)
    lane, t0, t1, vfl, v16 = V.alloc(), V.alloc(), V.alloc(), V.alloc(), V.alloc()
    k(f"v_lshrrev_b32 {t0}, 6, v0")
    k(f"v_and_b32 {lane}, 63, v0")
    k(f"v_readfirstlane_b32 s3, {t0}")
    k(f"v_lshlrev_b32 {vfl}, 2, {lane}")
    k(f"v_add_u32 {vfl}, {K2_F}, {vfl}")
    k(f"v_mov_b32 {t1}, 0")
    k(f"ds_write_b32 {vfl}, {t1}")
    k(f"v_lshlrev_b32 {v16}, 4, {lane}")
    k("s_and_b32 s4, s2, 7")
    k("s_lshl_b32 s4, s4, 1")
    k("s_bfe_u32 s5, s2, 0x10003")
    k("s_add_u32 s7, s4, s5")
    k("s_lshr_b32 s6, s2, 4")
    k("s_waitcnt lgkmcnt(0)")
    k("s_barrier")
    sWS = S(20, 4)
    srd(k, sWS, S(18, 2), WS_SIZE)
    k("s_cmp_ge_u32 s3, 4")
    k("s_cbranch_scc1 k2_conv")
    base_used = set(V.used)

    O = [V.alloc(16, 4) for _ in range(4)]
    Sx = [V.alloc(16, 4) for _ in range(4)]
    Q = [V.alloc(8, 4) for _ in range(4)]
    KV = [V.alloc(16, 4) for _ in range(4)]
    vidx = V.alloc()
    k("s_lshl_b32 s8, s7, 6")
    k("s_lshl_b32 s9, s3, 4")
    k("s_add_u32 s9, s9, s8")
    k("s_lshl_b32 s9, s9, 12")
    k(f"s_add_u32 s9, s9, {KVF}")
    k("s_lshl_b32 s10, s6, 2")
    k("s_add_u32 s10, s10, s8")

    def kvload(buf):
        for f in range(4):
            k(f"buffer_load_dwordx4 {KV[buf][4 * f:4 * f + 4]}, {v16}, {sWS}, s9 offen offset:{1024 * f}")
        k("s_add_u32 s9, s9, 4096")

    def qload(i):
        k(f"s_add_u32 s11, s3, {i}")
        k("s_and_b32 s11, s11, 3")
        k("s_add_u32 s11, s11, s10")
        k("s_lshl_b32 s11, s11, 11")
        for f in range(2):
            k(f"buffer_load_dwordx4 {Q[i][4 * f:4 * f + 4]}, {v16}, {sWS}, s11 offen offset:{1024 * f}")

    qload(0)
    kvload(0)
    for i in range(1, 4):
        qload(i)
    kvload(1)
    kvload(2)
    k(f"v_mov_b32 {vidx}, 0xdddddddd")
    for i in range(4):
        for r in range(16):
            k(f"v_mov_b32 {O[i][r]}, 0")
    for r in range(8, 16):
        k(f"v_mov_b32 {Sx[3][r]}, 0")
    for r in range(12, 16):
        k(f"v_mov_b32 {KV[3][r]}, 0")

    def Ma(kb, qt):
        return f"v_mfma_f32_32x32x16_bf16 {Sx[qt]}, {KV[kb][0:4]}, {Q[qt][0:4]}, 0"

    def Mb(kb, qt):
        return f"v_mfma_f32_32x32x16_bf16 {Sx[qt]}, {KV[kb][4:8]}, {Q[qt][4:8]}, {Sx[qt]}"

    def SM(kb, qt, t):
        return f"v_smfmac_f32_32x32x32_bf16 {O[qt]}, {KV[kb][8 + 4 * t:12 + 4 * t]}, {Sx[qt][8 * t:8 * t + 8]}, {vidx}"

    k(Ma(0, 0))
    k(Mb(0, 0))
    k("s_mov_b32 s12, 4")
    k("s_nop 7")
    k.label("k2_loop")
    for p in range(4):
        for qt in range(4):
            nkb, nqt = (p, qt + 1) if qt < 3 else ((p + 1) % 4, 0)
            pkb, pqt = (p, qt - 1) if qt > 0 else ((p - 1) % 4, 3)
            ms = [Ma(nkb, nqt), Mb(nkb, nqt), SM(pkb, pqt, 1), SM(p, qt, 0)]
            for g in range(4):
                k(ms[g])
                if qt == 1:
                    k(f"buffer_load_dwordx4 {KV[(p + 3) % 4][4 * g:4 * g + 4]}, {v16}, {sWS}, s9 offen offset:{1024 * g}")
                    if g == 3:
                        k("s_add_u32 s9, s9, 4096")
                if p == 3 and qt == 3 and g == 3:
                    k("s_sub_u32 s12, s12, 1")
                    k("s_cmp_lg_u32 s12, 0")
                for e in range(4):
                    k(f"v_exp_f32 {Sx[qt][4 * g + e]}, {Sx[qt][4 * g + e]}")
    k("s_cbranch_scc1 k2_loop")
    k(SM(3, 3, 1))
    va = V.alloc()
    for i in range(1, 4):
        k(f"s_add_u32 s11, s3, {i}")
        k("s_and_b32 s11, s11, 3")
        k("s_mul_i32 s11, s11, 12288")
        k(f"v_add_u32 {va}, s11, {v16}")
        for f in range(4):
            k(f"ds_write_b128 {va}, {O[i][4 * f:4 * f + 4]} offset:{K2_R + (i - 1) * 4096 + 1024 * f}")
    k("s_mul_i32 s11, s3, 12288")
    k(f"v_add_u32 {va}, s11, {v16}")
    k("s_waitcnt lgkmcnt(0)")
    k("s_barrier")
    for i in range(1, 4):
        for f in range(4):
            k(f"ds_read_b128 {O[i][4 * f:4 * f + 4]}, {va} offset:{K2_R + (i - 1) * 4096 + 1024 * f}")
    vh = V.alloc()
    k(f"v_cmp_gt_u32 vcc, 32, {lane}")
    k(f"v_cndmask_b32 {vh}, 0, -1, vcc")
    k("s_lshl_b32 s11, s6, 2")
    k("s_add_u32 s11, s11, s3")
    k("s_lshl_b32 s11, s11, 4")
    k("s_add_u32 s11, s11, s7")
    k("s_lshl_b32 s11, s11, 11")
    k(f"s_add_u32 s11, s11, {OF}")
    for i in range(1, 4):
        for r in range(0, 16, 2):
            k(f"v_pk_add_f32 {O[0][r:r + 2]}, {O[0][r:r + 2]}, {O[i][r:r + 2]}")
    la, lb = V.alloc(2), V.alloc(2)
    k(f"v_mov_b32 {la[0]}, {O[0][12]}")
    k(f"v_mov_b32 {lb[0]}, {O[0][12]}")
    T = O[1]
    for r in range(0, 8, 2):
        k(f"v_pk_add_f32 {T[r:r + 2]}, {O[0][r:r + 2]}, {O[0][r + 8:r + 10]}")
    k(f"v_permlane32_swap_b32 {la[0]}, {lb[0]}")
    k(f"v_pk_add_f32 {T[0:2]}, {T[0:2]}, {T[4:6]}")
    k(f"v_pk_add_f32 {T[2:4]}, {T[2:4]}, {T[6:8]}")
    k(f"v_pk_add_f32 {T[0:2]}, {T[0:2]}, {T[2:4]}")
    k(f"v_add_f32 {T[0]}, {T[0]}, {T[1]}")
    k(f"v_mov_b32 {T[1]}, 0x207")
    k(f"v_cmp_class_f32 s[14:15], {T[0]}, {T[1]}")
    k(f"v_cmp_nle_f32 vcc, {f32(2.0 ** -30)}, {lb[0]}")
    k("s_or_b64 s[14:15], s[14:15], vcc")
    k(f"v_cmp_nge_f32 vcc, {f32(2.0 ** 30)}, {lb[0]}")
    k("s_or_b64 s[14:15], s[14:15], vcc")
    if opts.get("force_fb"):
        k("s_mov_b64 s[14:15], -1")
    k("s_cmp_lg_u64 s[14:15], 0")
    k("s_cbranch_scc1 k2_fb")
    k.label("k2_fin")
    k(f"v_rcp_f32 {lb[0]}, {lb[0]}")
    for r in range(0, 16, 2):
        k(f"v_pk_mul_f32 {O[0][r:r + 2]}, {O[0][r:r + 2]}, {lb} op_sel:[0,0] op_sel_hi:[1,0]")
    for r in range(8):
        k(f"v_cvt_pk_bf16_f32 {T[r]}, {O[0][2 * r]}, {O[0][2 * r + 1]}")
    for r in (6, 7):
        k(f"v_and_b32 {T[r]}, {vh}, {T[r]}")
    for f in range(2):
        k(f"buffer_store_dwordx4 {T[4 * f:4 * f + 4]}, {v16}, {sWS}, s11 offen offset:{1024 * f}{st}")
    k("s_endpgm")

    k.label("k2_fb")
    vm = V.alloc()
    k("s_waitcnt vmcnt(0)")
    k("s_lshl_b32 s13, s7, 18")
    k(f"s_add_u32 s13, s13, {KVF}")
    k("s_mov_b32 s9, s13")
    k("s_mov_b32 s12, 64")
    k(f"v_mov_b32 {vm}, 0xff800000")
    k.label("k2_fb1")
    for f in range(2):
        k(f"buffer_load_dwordx4 {KV[0][4 * f:4 * f + 4]}, {v16}, {sWS}, s9 offen offset:{1024 * f}")
    k("s_add_u32 s9, s9, 4096")
    k(Ma(0, 0))
    k(Mb(0, 0))
    for r in range(0, 16, 2):
        k(f"v_max3_f32 {vm}, {vm}, {Sx[0][r]}, {Sx[0][r + 1]}")
    k("s_sub_u32 s12, s12, 1")
    k("s_cmp_lg_u32 s12, 0")
    k("s_cbranch_scc1 k2_fb1")
    k(f"v_mov_b32 {la[0]}, {vm}")
    k(f"v_permlane32_swap_b32 {la[0]}, {vm}")
    k(f"v_max_f32 {vm}, {vm}, {la[0]}")
    for r in range(16):
        k(f"v_mov_b32 {O[0][r]}, 0")
    k("s_mov_b32 s9, s13")
    k("s_mov_b32 s12, 64")
    k.label("k2_fb2")
    kvload(0)
    k(Ma(0, 0))
    k(Mb(0, 0))
    for r in range(16):
        k(f"v_sub_f32 {Sx[0][r]}, {Sx[0][r]}, {vm}")
    for r in range(16):
        k(f"v_exp_f32 {Sx[0][r]}, {Sx[0][r]}")
    k(SM(0, 0, 0))
    k(SM(0, 0, 1))
    k("s_sub_u32 s12, s12, 1")
    k("s_cmp_lg_u32 s12, 0")
    k("s_cbranch_scc1 k2_fb2")
    k(f"v_mov_b32 {la[0]}, {O[0][12]}")
    k(f"v_mov_b32 {lb[0]}, {O[0][12]}")
    k(f"v_permlane32_swap_b32 {la[0]}, {lb[0]}")
    k("s_branch k2_fin")

    k.label("k2_conv")
    V.used = set(base_used)
    k("s_cmp_ge_u32 s2, 224")
    k("s_cbranch_scc1 k2_end")
    k("s_sub_u32 s3, s3, 4")
    k("s_lshr_b32 s4, s3, 1")
    k("s_and_b32 s5, s3, 1")
    k("s_lshl_b32 s8, s2, 1")
    k("s_add_u32 s8, s8, s4")
    k("s_mul_i32 s9, s8, 6144")
    k(f"s_add_u32 s9, s9, {KT}")
    k("s_add_u32 s10, s9, 3072")
    kt = [V.alloc(12, 4) for _ in range(2)]
    for hf in range(2):
        for f in range(3):
            k(f"buffer_load_dwordx4 {kt[hf][4 * f:4 * f + 4]}, {v16}, {sWS}, s{9 + hf} offen offset:{1024 * f}")
    sU = S(24, 4)
    srd(k, sU, S(16, 2), 2048 * 896)
    ug = V.alloc(8)
    k(f"v_mul_u32_u24 {t0}, 896, {lane}")
    k("s_mul_i32 s11, s3, 458752")
    k("s_lshl_b32 s12, s2, 2")
    k("s_add_u32 s11, s11, s12")
    for i in range(8):
        k(f"buffer_load_dword {ug[i]}, {t0}, {sU}, s11 offen")
        if i < 7:
            k("s_add_u32 s11, s11, 57344")
    k(f"s_mul_i32 s13, s4, {CHS}")
    k(f"s_add_u32 s13, s13, {K2_C}")
    vz = V.alloc(2)
    k(f"v_mov_b32 {vz[0]}, 0")
    k(f"v_mov_b32 {vz[1]}, 0")
    k(f"v_lshl_add_u32 {t1}, {lane}, 3, s13")
    k(f"ds_write_b64 {t1}, {vz} offset:{UR + 4096}")
    k("s_cmp_lg_u32 s5, 0")
    k("s_cbranch_scc1 k2_nz")
    k(f"v_lshl_add_u32 {t1}, {lane}, 1, s13")
    k(f"ds_write_b16 {t1}, {vz[0]} offset:{KE}")
    k(f"ds_write_b16 {t1}, {vz[0]} offset:{KO}")
    k.label("k2_nz")
    a0, a2, a3, a4, vj = V.alloc(), V.alloc(), V.alloc(), V.alloc(), V.alloc()
    k(f"v_and_b32 {vj}, 31, {lane}")
    k(f"v_lshrrev_b32 {t1}, 5, {lane}")
    k(f"v_lshl_add_u32 {a0}, {vj}, 1, {t1}")
    k(f"v_lshl_add_u32 {a0}, {a0}, 3, s13")
    k(f"v_lshl_add_u32 {a4}, {t1}, 7, {vj}")
    k(f"v_lshl_add_u32 {a4}, {a4}, 1, s13")
    k(f"v_lshl_add_u32 {a2}, {vj}, 3, s13")
    k(f"v_lshl_add_u32 {t0}, {vj}, 2, s13")
    k(f"v_add_u32 {t0}, 256, {t0}")
    k(f"v_cmp_gt_u32 vcc, 32, {lane}")
    k(f"v_cndmask_b32 {a2}, {t0}, {a2}, vcc")
    k(f"v_mov_b32 {t0}, 128")
    k(f"v_cndmask_b32 {t0}, {t0}, 4, vcc")
    k(f"v_add_u32 {a3}, {a2}, {t0}")
    vx = V.alloc()
    ra = V.alloc(4)
    k("s_lshl_b32 s14, s5, 6")
    k(f"v_add_u32 {vx}, s14, {lane}")
    k(f"v_lshl_add_u32 {ra[0]}, {vx}, 1, s13")
    for kk in (1, 2, 3):
        k(f"v_bfe_u32 {t0}, {vx}, {kk}, 1")
        k(f"v_add3_u32 {t0}, {t0}, {vx}, {(1 << (kk - 1)) - 1}")
        k(f"v_lshrrev_b32 {t0}, {kk}, {t0}")
        k(f"v_lshl_add_u32 {ra[kk]}, {t0}, 1, s13")
    vu = V.alloc()
    k("s_lshl_b32 s14, s3, 10")
    k(f"s_sub_u32 s14, {K2_C + UR + 4094 - 896}, s14")
    k(f"v_lshlrev_b32 {t0}, 1, {lane}")
    k(f"v_sub_u32 {vu}, s14, {t0}")
    vA, vB, vY, vone = V.alloc(), V.alloc(), V.alloc(), V.alloc()
    k(f"v_mov_b32 {vone}, 1")
    k(f"v_lshrrev_b32 {t1}, 4, {lane}")
    k(f"v_bfe_u32 {t0}, {lane}, 1, 3")
    k(f"v_lshl_add_u32 {t0}, {t1}, 2, {t0}")
    k(f"v_lshl_add_u32 {vA}, {t0}, 2, s13")
    k(f"v_and_b32 {t0}, 1, {lane}")
    k(f"v_xor_b32 {t0}, 1, {t0}")
    k(f"v_mul_u32_u24 {t0}, {KO - KE}, {t0}")
    k(f"v_add_u32 {vA}, {vA}, {t0}")
    k(f"v_and_b32 {t0}, 15, {lane}")
    k(f"v_lshlrev_b32 {vY}, 5, {t0}")
    k(f"v_lshl_add_u32 {vY}, {t1}, 3, {vY}")
    k(f"v_xor_b32 {t0}, 15, {t0}")
    k(f"v_lshl_add_u32 {t0}, {t0}, 1, {t1}")
    k(f"v_lshl_add_u32 {vB}, {t0}, 4, s13")
    pp = V.alloc(6)
    for r in range(0, 12, 2):
        k(f"v_pk_add_f32 {kt[0][r:r + 2]}, {kt[0][r:r + 2]}, {kt[1][r:r + 2]}")
    for r in range(6):
        k(f"v_cvt_pk_bf16_f32 {pp[r]}, {kt[0][2 * r]}, {kt[0][2 * r + 1]}")
    k(f"ds_write_b64 {a0}, {pp[0:2]} offset:{TB}")
    k(f"ds_write_b32 {a2}, {pp[2]} offset:{TB + 512}")
    k(f"ds_write_b32 {a3}, {pp[3]} offset:{TB + 512}")
    k(f"ds_write_b16 {a4}, {pp[4]} offset:{TB + 1024}")
    k(f"ds_write_b16_d16_hi {a4}, {pp[4]} offset:{TB + 1024 + 64}")
    k(f"ds_write_b16 {a4}, {pp[5]} offset:{TB + 1024 + 128}")
    k(f"ds_write_b16_d16_hi {a4}, {pp[5]} offset:{TB + 1024 + 192}")
    ex = V.alloc(16)
    for half in range(2):
        for m in range(8 * half, 8 * half + 8):
            kk = 0 if m < 2 else 1 if m < 4 else 2 if m < 8 else 3
            k(f"ds_read_u16 {ex[m]}, {ra[kk]} offset:{TB + 2 * (128 * kk + ((128 * m) >> kk))}")
        for m in range(8 * half, 8 * half + 8):
            k(f"ds_write_b16 {ra[0]}, {ex[m]} offset:{KE + 256 * m + 28}")
            k(f"ds_write_b16 {ra[0]}, {ex[m]} offset:{KO + 256 * m + 30}")
    for i in range(8):
        k(f"ds_write_b16 {vu}, {ug[i]} offset:{128 * (7 - i)}")
        k(f"ds_write_b16_d16_hi {vu}, {ug[i]} offset:{128 * (7 - i) + CHS}")
    k("s_waitcnt lgkmcnt(0)")
    k(f"ds_add_u32 {vfl}, {vone}")
    k("s_mov_b32 s15, 0x40000")
    k.label("k2_sync")
    k(f"ds_read_b32 {t0}, {vfl}")
    k("s_sub_u32 s15, s15, 1")
    k("s_cbranch_scc1 k2_go")
    k(f"v_readfirstlane_b32 s14, {t0}")
    k("s_cmp_lt_u32 s14, 4")
    k("s_cbranch_scc1 k2_sync")
    k.label("k2_go")
    k("s_waitcnt lgkmcnt(0)")
    k("s_lshl_b32 s9, s8, 12")
    k(f"s_add_u32 s9, s9, {YT}")
    NA, NB = 6, 12
    Ab = [V.alloc(4, 4) for _ in range(NA)]
    Bb = [V.alloc(4, 4) for _ in range(NB)]
    acc = [V.alloc(4, 4) for _ in range(4)]
    yo = V.alloc(2)
    k("s_cmp_lg_u32 s5, 0")
    k("s_cbranch_scc1 k2_c1")
    for p, tiles in enumerate(([7, 5, 2, 0], [6, 4, 3, 1])):
        if p == 1:
            k.label("k2_c1")
        ns = 8 * tiles[0] + 8
        rd, mf = [], []
        nb = 0
        for s in range(ns):
            r, m = [], []
            A = Ab[s % NA]
            if s and s % 16 == 0:
                r.append(f"v_add_u32 {vA}, 1024, {vA}")
            o = 16 * (s % 16)
            r.append(f"ds_read2_b32 {A[0:2]}, {vA} offset0:{o} offset1:{o + 1}")
            r.append(f"ds_read2_b32 {A[2:4]}, {vA} offset0:{o + 2} offset1:{o + 3}")
            for ti, i in enumerate(tiles):
                if s < 8 * i + 8:
                    B = Bb[nb % NB]
                    nb += 1
                    r.append(f"ds_read_b128 {B}, {vB} offset:{UR + 3584 + 64 * (s - 8 * i)}")
                    c = "0" if s == 0 else str(acc[ti])
                    m.append(f"v_mfma_f32_16x16x32_bf16 {acc[ti]}, {A}, {B}, {c}")
            rd.append(r)
            mf.append(m)
        issued = 0
        pend = []
        for s in range(ns):
            while issued < ns and issued - s < NA - 1:
                inflight = sum(len(mf[x]) + 2 for x in range(s, issued + 1))
                binfl = sum(len(mf[x]) for x in range(max(s - 1, 0), issued + 1))
                if issued > s and (inflight > 13 or binfl > NB):
                    break
                for x in rd[issued]:
                    k(x)
                issued += 1
            for x in mf[s]:
                k(x)
            for ti, i in enumerate(tiles):
                if s == min(8 * i + 9, ns - 1):
                    k(f"v_cvt_pk_bf16_f32 {yo[0]}, {acc[ti][0]}, {acc[ti][1]}")
                    k(f"v_cvt_pk_bf16_f32 {yo[1]}, {acc[ti][2]}, {acc[ti][3]}")
                    k(f"buffer_store_dwordx2 {yo}, {vY}, {sWS}, s9 offen offset:{512 * i}{sty}")
        k("s_endpgm")
    k.label("k2_end")
    k("s_endpgm")
    return k


K3_P = 0
K3_YS = 34816
K3_YI = K3_YS + 9216
K3_W = K3_YI + 8192
K3_LDS = K3_W + 57344


def gen_k3(opts):
    k = Kernel("k3_kernel")
    st = opts.get("st3", "")
    k("s_cmp_ge_u32 s2, 224")
    k("s_cbranch_scc1 k3_end")
    k("s_load_dwordx4 s[16:19], s[0:1], 88")
    k("s_load_dwordx2 s[20:21], s[0:1], 112")
    V = RA("v", 1, 256)
    lane, t0, t1, v16, vout = V.alloc(), V.alloc(), V.alloc(), V.alloc(), V.alloc()
    k(f"v_lshrrev_b32 {t0}, 6, v0")
    k(f"v_and_b32 {lane}, 63, v0")
    k(f"v_readfirstlane_b32 s3, {t0}")
    k(f"v_lshlrev_b32 {v16}, 4, {lane}")
    k("s_and_b32 s4, s2, 7")
    k("s_lshr_b32 s5, s2, 3")
    k("s_mul_i32 s6, s5, 37")
    k("s_lshr_b32 s6, s6, 8")
    k("s_mul_i32 s7, s6, 7")
    k("s_sub_u32 s7, s5, s7")
    k("s_lshl_b32 s4, s4, 2")
    k("s_add_u32 s6, s6, s4")
    k("s_mul_i32 s8, s6, 114688")
    k("s_lshl_b32 s9, s7, 7")
    k("s_add_u32 s8, s8, s9")
    k("s_waitcnt lgkmcnt(0)")
    sWS, sO = S(24, 4), S(28, 4)
    srd(k, sWS, S(20, 2), WS_SIZE)
    srd(k, sO, S(18, 2), 2048 * 1792)
    k("s_cmp_ge_u32 s3, 4")
    k("s_cbranch_scc1 k3_aux")
    base_used = set(V.used)
    of = [V.alloc(4, 4) for _ in range(16)]
    k("s_and_b32 s10, s3, 1")
    k("s_lshr_b32 s11, s3, 1")
    k("s_lshl_b32 s12, s6, 1")
    k("s_add_u32 s12, s12, s10")
    k("s_lshl_b32 s12, s12, 1")
    k("s_add_u32 s12, s12, s11")
    k("s_lshl_b32 s12, s12, 14")
    k(f"s_add_u32 s12, s12, {OF}")
    for i in range(16):
        k(f"buffer_load_dwordx4 {of[i]}, {v16}, {sWS}, s12 offen offset:{1024 * (i & 3)}")
        if i & 3 == 3 and i < 15:
            k("s_add_u32 s12, s12, 4096")
    wa = [[V.alloc(), V.alloc()], [V.alloc(), V.alloc()]]
    k(f"v_bfe_u32 {t0}, {lane}, 2, 2")
    k(f"v_lshlrev_b32 {t1}, 7, {t0}")
    k(f"v_bfe_u32 {t0}, {lane}, 3, 1")
    k(f"v_lshl_add_u32 {t1}, {t0}, 6, {t1}")
    k(f"v_bfe_u32 {t0}, {lane}, 4, 1")
    k(f"v_lshl_add_u32 {t1}, {t0}, 5, {t1}")
    k(f"v_and_b32 {t0}, 3, {lane}")
    k(f"v_lshl_add_u32 {t1}, {t0}, 3, {t1}")
    k("s_mul_i32 s13, s11, 28672")
    k(f"s_add_u32 s13, s13, {K3_W}")
    k(f"v_add_u32 {wa[1][0]}, s13, {t1}")
    k(f"v_xor_b32 {wa[1][1]}, 64, {wa[1][0]}")
    k(f"v_lshrrev_b32 {t0}, 5, {lane}")
    k(f"v_lshl_add_u32 {wa[0][0]}, {t0}, 9, {wa[1][0]}")
    k(f"v_xor_b32 {wa[0][1]}, 64, {wa[0][0]}")
    vp = V.alloc()
    k(f"v_and_b32 {t1}, 31, {lane}")
    k(f"v_mul_u32_u24 {t1}, 272, {t1}")
    k(f"v_lshl_add_u32 {t1}, {t0}, 4, {t1}")
    k("s_mul_i32 s13, s11, 17408")
    k("s_mul_i32 s14, s10, 8704")
    k("s_add_u32 s13, s13, s14")
    k(f"v_add_u32 {vp}, s13, {t1}")
    acc = [V.alloc(16, 4) for _ in range(2)]
    NW = 3
    wf = [[V.alloc(4, 4) for _ in range(2)] for _ in range(NW)]

    def reads(i):
        h, f = i >> 1, i & 1
        for nt in range(2):
            k(f"ds_read_b64_tr_b16 {wf[i % NW][nt][0:2]}, {wa[0][nt]} offset:{128 * (28 * h + 16 * f)}")
            k(f"ds_read_b64_tr_b16 {wf[i % NW][nt][2:4]}, {wa[f][nt]} offset:{128 * (28 * h + 16 * f + 8)}")

    for stg in range(2):
        k("s_barrier")
        reads(8 * stg)
        reads(8 * stg + 1)
        for i in range(8 * stg, 8 * stg + 8):
            if i + 2 < 8 * stg + 8:
                reads(i + 2)
            for nt in range(2):
                c = "0" if i == 0 else str(acc[nt])
                k(f"v_mfma_f32_32x32x16_bf16 {acc[nt]}, {wf[i % NW][nt]}, {of[i]}, {c}")
    for nt in range(2):
        for g in range(4):
            k(f"ds_write_b128 {vp}, {acc[nt][4 * g:4 * g + 4]} offset:{K3_P + 128 * nt + 32 * g}")
    k("s_branch k3_fin")

    k.label("k3_aux")
    V.used = set(base_used)
    k("s_sub_u32 s3, s3, 4")
    sW = S(32, 4)
    srd(k, sW, S(16, 2), 448 * 896)
    vw, vy = V.alloc(), V.alloc()
    k(f"v_lshrrev_b32 {t0}, 3, {lane}")
    k(f"v_and_b32 {t1}, 7, {lane}")
    k(f"v_lshlrev_b32 {vy}, 12, {t0}")
    k(f"v_lshl_add_u32 {vy}, {t1}, 4, {vy}")
    k(f"v_mul_u32_u24 {t0}, 896, {t0}")
    k(f"v_lshl_add_u32 {vw}, {t1}, 4, {t0}")
    k(f"v_and_b32 {t1}, 16, {lane}")
    k(f"v_lshlrev_b32 {t1}, 2, {t1}")
    k(f"v_xor_b32 {vw}, {vw}, {t1}")
    k("s_lshr_b32 s10, s3, 1")
    k("s_mul_i32 s10, s10, 224")
    k("s_and_b32 s11, s3, 1")
    k("s_mul_i32 s11, s11, 56")
    k("s_add_u32 s10, s10, s11")
    k("s_lshl_b32 s11, s10, 7")
    k("s_mul_i32 s10, s10, 896")
    k("s_add_u32 s10, s10, s9")

    def wdma(stg):
        for i in range(7):
            row = 112 * stg + 8 * i
            k(f"s_add_u32 s12, s10, {row * 896}")
            k(f"s_add_u32 m0, s11, {K3_W + row * 128}")
            k(f"buffer_load_dwordx4 {vw}, {sW}, s12 offen lds", tag=f"W{stg}")

    wdma(0)
    k("s_lshl_b32 s13, s7, 2")
    k("s_add_u32 s13, s13, s3")
    k("s_lshl_b32 s13, s13, 16")
    k("s_lshl_b32 s14, s6, 7")
    k("s_add_u32 s13, s13, s14")
    k(f"s_add_u32 s13, s13, {YT}")
    k("s_lshl_b32 s14, s3, 11")
    k(f"s_add_u32 s14, s14, {K3_YI}")
    for i in range(2):
        k(f"s_add_u32 m0, s14, {1024 * i}")
        k(f"buffer_load_dwordx4 {vy}, {sWS}, s13 offen lds", tag="Y")
        if i == 0:
            k("s_add_u32 s13, s13, 32768")
    wdma(1)
    yr, yw, yo = V.alloc(), V.alloc(), V.alloc()
    k(f"v_bfe_u32 {t0}, {lane}, 2, 2")
    k(f"v_lshlrev_b32 {t1}, 7, {t0}")
    k(f"v_lshrrev_b32 {t0}, 4, {lane}")
    k(f"v_lshl_add_u32 {t1}, {t0}, 5, {t1}")
    k(f"v_and_b32 {t0}, 3, {lane}")
    k(f"v_lshl_add_u32 {t1}, {t0}, 3, {t1}")
    k(f"v_add_u32 {yr}, s14, {t1}")
    k(f"v_mul_u32_u24 {t0}, 144, {lane}")
    k("s_lshl_b32 s15, s3, 5")
    k(f"v_add_u32 {yw}, s15, {t0}")
    k.need("W0")
    k("s_barrier")
    yv = V.alloc(8, 4)
    k.need("Y")
    for q in range(4):
        k(f"ds_read_b64_tr_b16 {yv[2 * q:2 * q + 2]}, {yr} offset:{512 * q}")
    for f in range(2):
        k(f"ds_write_b128 {yw}, {yv[4 * f:4 * f + 4]} offset:{K3_YS + 16 * f}")
    k(f"v_lshrrev_b32 {t0}, 3, {lane}")
    k("s_lshl_b32 s15, s3, 4")
    k(f"v_add_u32 {t0}, s15, {t0}")
    k(f"v_and_b32 {t1}, 7, {lane}")
    k(f"v_mul_u32_u24 {yr}, 144, {t0}")
    k(f"v_lshl_add_u32 {yr}, {t1}, 4, {yr}")
    k(f"v_mul_u32_u24 {yo}, 1792, {t0}")
    k(f"v_lshl_add_u32 {yo}, {t1}, 4, {yo}")
    k.need("W1")
    k("s_waitcnt lgkmcnt(0)")
    k("s_barrier")
    for i in range(2):
        k(f"ds_read_b128 {yv[4 * i:4 * i + 4]}, {yr} offset:{K3_YS + 1152 * i}")
    k("s_add_u32 s15, s8, 14336")
    k(f"buffer_store_dwordx4 {yv[0:4]}, {yo}, {sO}, s8 offen{st}")
    k(f"buffer_store_dwordx4 {yv[4:8]}, {yo}, {sO}, s15 offen{st}")

    k.label("k3_fin")
    V.used = set(base_used)
    pr = V.alloc()
    k(f"v_lshrrev_b32 {t0}, 3, v0")
    k(f"v_and_b32 {t1}, 7, v0")
    k(f"v_mul_u32_u24 {pr}, 272, {t0}")
    k(f"v_lshl_add_u32 {pr}, {t1}, 5, {pr}")
    k(f"v_mul_u32_u24 {vout}, 1792, {t0}")
    k(f"v_lshl_add_u32 {vout}, {t1}, 4, {vout}")
    k("s_waitcnt lgkmcnt(0)")
    k("s_barrier")
    pa = [V.alloc(8, 4) for _ in range(2)]
    for h in range(2):
        for f in range(2):
            k(f"ds_read_b128 {pa[h][4 * f:4 * f + 4]}, {pr} offset:{K3_P + 17408 * h + 16 * f}")
    for r in range(0, 8, 2):
        k(f"v_pk_add_f32 {pa[0][r:r + 2]}, {pa[0][r:r + 2]}, {pa[1][r:r + 2]}")
    for r in range(4):
        k(f"v_cvt_pk_bf16_f32 {pa[1][r]}, {pa[0][2 * r]}, {pa[0][2 * r + 1]}")
    k(f"buffer_store_dwordx4 {pa[1][0:4]}, {vout}, {sO}, s8 offen offset:896{st}")
    k.label("k3_end")
    k("s_endpgm")
    return k
```

```python
import sys, struct, math
sys.path.insert(0, "dev")
from asmgen import *

NAME = "concat_heads__ssm_conv_s4__softmax_full_mha__prompt"
QF, KVF, OF, KT, YT = 0x0, 0x200000, 0x600000, 0x800000, 0xC00000
WS_SIZE = 0x10000000
LOG2E = 1.4426950408889634


def f32(x):
    return "0x%08x" % struct.unpack("<I", struct.pack("<f", x))[0]


def srd(k, s, ptr, size):
    k(f"s_mov_b32 {s[0]}, {ptr[0]}")
    k(f"s_and_b32 {s[1]}, {ptr[1]}, 0xffff")
    k(f"s_mov_b32 {s[2]}, {size}")
    k(f"s_mov_b32 {s[3]}, 0x00020000")


def S(a, n=1):
    return Reg("s", a, n)


def cmul(d, z, w):
    return [f"v_pk_mul_f32 {d}, {z}, {w} op_sel:[0,0] op_sel_hi:[0,1]",
            f"v_pk_fma_f32 {d}, {z}, {w}, {d} op_sel:[1,1,0] op_sel_hi:[1,0,1] neg_lo:[1,0,0]"]


def interleave(*lists):
    out = []
    n = [len(l) for l in lists]
    pos = [0] * len(lists)
    tot = sum(n)
    for _ in range(tot):
        best, bi = None, None
        for i, l in enumerate(lists):
            if pos[i] < n[i]:
                f = (pos[i] + 0.5) / n[i]
                if best is None or f < best:
                    best, bi = f, i
        out.append(lists[bi][pos[bi]])
        pos[bi] += 1
    return out


K1_W = 0
K1_X = 86016
K1_G = K1_X + 40960
K1_F = K1_G + 34816
K1_LDS = K1_F + 2048
XR = 5
ST = ""


def gen_k1(opts):
    k = Kernel("k1_kernel")
    st = opts.get("st1", "")
    k("s_cmp_ge_u32 s2, 256")
    k("s_cbranch_scc1 k1_end")
    k("s_load_dwordx16 s[16:31], s[0:1], 8")
    k("s_load_dwordx4 s[32:35], s[0:1], 72")
    k("s_load_dwordx2 s[36:37], s[0:1], 112")
    V = RA("v", 1, 256)
    lane = V.alloc()
    t0, t1 = V.alloc(), V.alloc()
    vz = V.alloc(4)
    vfl = V.alloc()
    k(f"v_lshrrev_b32 {t0}, 6, v0")
    k(f"v_and_b32 {lane}, 63, v0")
    k(f"v_readfirstlane_b32 s3, {t0}")
    for i in range(4):
        k(f"v_mov_b32 {vz[i]}, 0")
    k(f"v_lshlrev_b32 {t1}, 4, {lane}")
    k(f"v_add_u32 {t1}, {K1_F}, {t1}")
    k(f"ds_write_b128 {t1}, {vz}")
    k(f"ds_write_b128 {t1}, {vz} offset:1024")
    k(f"v_lshlrev_b32 {vfl}, 2, {lane}")
    k(f"v_add_u32 {vfl}, {K1_F}, {vfl}")
    k("s_and_b32 s4, s2, 7")
    k("s_lshr_b32 s5, s2, 3")
    k("s_lshr_b32 s6, s4, 1")
    k("s_lshl_b32 s6, s6, 2")
    k("s_and_b32 s7, s5, 3")
    k("s_add_u32 s6, s6, s7")
    k("s_and_b32 s7, s4, 1")
    k("s_lshl_b32 s7, s7, 3")
    k("s_lshr_b32 s5, s5, 2")
    k("s_add_u32 s7, s7, s5")
    k("s_waitcnt lgkmcnt(0)")
    k("s_barrier")
    sWS = S(40, 4)
    srd(k, sWS, S(36, 2), WS_SIZE)
    k("s_cmp_ge_u32 s3, 4")
    k("s_cbranch_scc1 k1_aux")

    base_used = set(V.used)
    sX = S(44, 4)
    srd(k, sX, S(32, 2), 2048 * 896)
    vXo = V.alloc()
    k(f"v_lshrrev_b32 {t0}, 2, {lane}")
    k(f"v_mul_u32_u24 {t0}, 896, {t0}")
    k(f"v_lshrrev_b32 {t1}, 4, {lane}")
    k(f"v_xor_b32 {t1}, {t1}, {lane}")
    k(f"v_and_b32 {t1}, 3, {t1}")
    k(f"v_lshl_add_u32 {vXo}, {t1}, 4, {t0}")
    k("s_lshl_b32 s8, s6, 2")
    k("s_add_u32 s8, s8, s3")
    k("s_mul_i32 s9, s8, 28672")
    k("s_add_u32 s10, s9, 14336")
    k(f"s_mul_i32 s11, s3, {XR * 2048}")
    k(f"s_add_u32 s11, s11, {K1_X}")

    def xdma(hs):
        for i in range(2):
            k(f"s_add_u32 m0, s11, {(hs % XR) * 2048 + 1024 * i - 64 * hs}")
            k(f"buffer_load_dwordx4 {vXo}, {sX}, s{9 + i} offen offset:{64 * hs} lds", tag=f"X{hs}")

    for hs in range(XR):
        xdma(hs)
    vXa = [V.alloc(), V.alloc()]
    k(f"v_and_b32 {t0}, 31, {lane}")
    k(f"v_lshlrev_b32 {t0}, 6, {t0}")
    k(f"v_add_u32 {t0}, s11, {t0}")
    k(f"v_bfe_u32 {t1}, {lane}, 2, 2")
    k(f"v_lshrrev_b32 {vXa[0]}, 5, {lane}")
    k(f"v_xor_b32 {t1}, {t1}, {vXa[0]}")
    k(f"v_lshl_add_u32 {vXa[0]}, {t1}, 4, {t0}")
    k(f"v_xor_b32 {vXa[1]}, 32, {vXa[0]}")
    vWa = [V.alloc(), V.alloc()]
    k(f"v_lshrrev_b32 {t0}, 5, {lane}")
    k(f"v_lshlrev_b32 {t0}, 9, {t0}")
    k(f"v_bfe_u32 {t1}, {lane}, 2, 2")
    k(f"v_lshl_add_u32 {t0}, {t1}, 6, {t0}")
    k(f"v_bfe_u32 {t1}, {lane}, 4, 1")
    k(f"v_lshl_add_u32 {t0}, {t1}, 5, {t0}")
    k(f"v_and_b32 {t1}, 3, {lane}")
    k("s_and_b32 s12, s7, 1")
    k(f"v_add_u32 {t1}, s12, {t1}")
    k(f"v_lshl_add_u32 {vWa[0]}, {t1}, 3, {t0}")
    if K1_W:
        k(f"v_add_u32 {vWa[0]}, {K1_W}, {vWa[0]}")
    k(f"v_add_u32 {vWa[1]}, {16 * 3072}, {vWa[0]}")
    acc = [V.alloc(16, 4) for _ in range(3)]
    xf = [V.alloc(4, 4) for _ in range(2)]
    wf = [[V.alloc(4, 4) for _ in range(3)] for _ in range(2)]
    vf = V.alloc()
    slow = []

    def flag_read(c):
        k(f"ds_read_b32 {vf}, {vfl} offset:{256 * c}")

    def flag_eval(c):
        sp, ok = f"k1_sp{c}", f"k1_ok{c}"
        k(f"v_readfirstlane_b32 s13, {vf}")
        k("s_cmp_lt_u32 s13, 4")
        k(f"s_cbranch_scc1 {sp}")
        k.label(ok)
        slow.append((c, sp, ok))

    def reads(ks):
        b = ks & 1
        hs, q = ks >> 1, ks & 1
        if q == 0:
            k.need(f"X{hs}")
        k(f"ds_read_b128 {xf[b]}, {vXa[q]} offset:{(hs % XR) * 2048}")
        for sec in range(3):
            off = ((ks % 16) * 3 + sec) * 1024
            a = vWa[ks // 16]
            k(f"ds_read_b64_tr_b16 {wf[b][sec][0:2]}, {a} offset:{off}")
            k(f"ds_read_b64_tr_b16 {wf[b][sec][2:4]}, {a} offset:{off + 256}")

    k("s_mov_b32 s48, 0x40000")
    flag_read(0)
    flag_eval(0)
    reads(0)
    for ks in range(28):
        b = ks & 1
        if ks % 4 == 2 and ks + 2 < 28:
            flag_read((ks + 2) // 4)
        if ks % 4 == 3 and ks + 1 < 28:
            flag_eval((ks + 1) // 4)
        if ks + 1 < 28:
            reads(ks + 1)
        for sec in range(3):
            c = "0" if ks == 0 else str(acc[sec])
            if sec < 2:
                k(f"v_mfma_f32_32x32x16_bf16 {acc[sec]}, {wf[b][sec]}, {xf[b]}, {c}")
            else:
                k(f"v_mfma_f32_32x32x16_bf16 {acc[sec]}, {xf[b]}, {wf[b][sec]}, {c}")
        if ks & 1 and (ks >> 1) + XR < 14:
            xdma((ks >> 1) + XR)
    vo, vok, vm, vc, vh = V.alloc(), V.alloc(), V.alloc(), V.alloc(), V.alloc()
    k(f"v_lshlrev_b32 {vo}, 4, {lane}")
    k(f"v_and_b32 {t0}, 0x33, {lane}")
    k(f"v_bfe_u32 {t1}, {lane}, 2, 1")
    k(f"v_lshl_add_u32 {t0}, {t1}, 3, {t0}")
    k(f"v_bfe_u32 {t1}, {lane}, 3, 1")
    k(f"v_lshl_add_u32 {t0}, {t1}, 2, {t0}")
    k(f"v_lshlrev_b32 {vok}, 4, {t0}")
    k(f"v_and_b32 {t0}, 31, {lane}")
    k(f"v_cmp_gt_u32 vcc, 28, {t0}")
    k(f"v_cndmask_b32 {vm}, 0, -1, vcc")
    k(f"v_mov_b32 {t1}, 0x3f803f80")
    k(f"v_cmp_eq_u32 vcc, 28, {t0}")
    k(f"v_cndmask_b32 {vc}, 0, {t1}, vcc")
    k(f"v_cmp_gt_u32 vcc, 32, {lane}")
    k(f"v_cndmask_b32 {vh}, 0, -1, vcc")
    k("s_lshl_b32 s12, s7, 6")
    k("s_add_u32 s12, s12, s8")
    k("s_lshl_b32 s13, s12, 11")
    k("s_lshl_b32 s14, s12, 12")
    k(f"s_add_u32 s14, s14, {KVF}")
    k(f"s_mov_b32 s15, {f32(28 ** -0.5 * LOG2E)}")
    pk = [V.alloc(8, 4) for _ in range(3)]
    for r in range(16):
        k(f"v_mul_f32 {acc[0][r]}, s15, {acc[0][r]}")
    for sec in range(3):
        for r in range(8):
            k(f"v_cvt_pk_bf16_f32 {pk[sec][r]}, {acc[sec][2 * r]}, {acc[sec][2 * r + 1]}")
        if sec < 2:
            for r in (6, 7):
                k(f"v_and_b32 {pk[sec][r]}, {vh}, {pk[sec][r]}")
        else:
            for r in range(8):
                k(f"v_and_or_b32 {pk[sec][r]}, {pk[sec][r]}, {vm}, {vc}")
        for f in range(2):
            if sec == 0:
                k(f"buffer_store_dwordx4 {pk[0][4 * f:4 * f + 4]}, {vo}, {sWS}, s13 offen offset:{1024 * f}{st}")
            elif sec == 1:
                k(f"buffer_store_dwordx4 {pk[1][4 * f:4 * f + 4]}, {vok}, {sWS}, s14 offen offset:{1024 * f}{st}")
            else:
                k(f"buffer_store_dwordx4 {pk[2][4 * f:4 * f + 4]}, {vo}, {sWS}, s14 offen offset:{2048 + 1024 * f}{st}")
    k("s_endpgm")
    for c, sp, ok in slow:
        k.label(sp)
        flag_read(c)
        k("s_sub_u32 s48, s48, 1")
        k(f"s_cbranch_scc1 {ok}")
        k(f"v_readfirstlane_b32 s13, {vf}")
        k("s_cmp_lt_u32 s13, 4")
        k(f"s_cbranch_scc1 {sp}")
        k(f"s_branch {ok}")

    k.label("k1_aux")
    V.used = set(base_used)
    k("s_sub_u32 s3, s3, 4")
    k("s_lshr_b32 s8, s3, 1")
    k("s_lshl_b32 s9, s2, 1")
    k("s_add_u32 s8, s8, s9")
    k("s_and_b32 s9, s3, 1")
    k("s_min_u32 s10, s2, 223")
    k("s_lshl_b32 s10, s10, 2")
    k("s_load_dword s48, s[28:29], s10")
    k("s_load_dword s49, s[30:31], s10")
    raw = V.alloc(6)
    vo4 = V.alloc()
    k(f"v_lshlrev_b32 {vo4}, 2, {lane}")
    k("s_lshl_b32 s10, s8, 9")
    k("s_lshl_b32 s11, s9, 8")
    k("s_add_u32 s10, s10, s11")
    for i in range(6):
        sI = S(52 + 4 * i, 4)
        srd(k, sI, S(16 + 2 * i, 2), 448 * 512)
        k(f"buffer_load_dword {raw[i]}, {vo4}, {sI}, s10 offen")
    sW = S(44, 4)
    srd(k, sW, S(34, 2), 448 * 2688)
    vWo = V.alloc()
    k(f"v_lshrrev_b32 {t0}, 2, {lane}")
    k(f"v_mul_u32_u24 {t0}, 2688, {t0}")
    k(f"v_and_b32 {t1}, 3, {lane}")
    k(f"v_lshl_add_u32 {vWo}, {t1}, 4, {t0}")
    k("s_mul_i32 s11, s3, 43008")
    k("s_lshr_b32 s12, s7, 1")
    k("s_mul_i32 s12, s12, 112")
    k("s_add_u32 s11, s11, s12")
    k("s_and_b32 s12, s7, 1")
    k("s_mul_i32 s12, s12, 48")
    k("s_add_u32 s11, s11, s12")
    k("s_mul_i32 s12, s3, 3072")
    for c in range(7):
        for sec in range(3):
            k(f"s_add_u32 m0, s12, {K1_W + c * 12288 + sec * 128}")
            k(f"buffer_load_dwordx4 {vWo}, {sW}, s11 offen offset:{896 * sec} lds", tag=f"W{c}")
        if c < 6:
            k(f"s_add_u32 s11, s11, {64 * 2688}")
    vone = V.alloc()
    k(f"v_mov_b32 {vone}, 1")
    k("s_bitcmp1_b32 s8, 0")
    k("s_cselect_b32 s50, 0, 16")
    k("s_lshl_b32 s48, s48, s50")
    k("s_and_b32 s48, s48, 0xffff0000")
    k("s_lshl_b32 s49, s49, s50")
    k("s_and_b32 s49, s49, 0xffff0000")
    k("s_cmp_eq_u32 s9, 0")
    k("s_cselect_b32 s49, s49, 0")
    vdt, vD = V.alloc(), V.alloc()
    l2e_hi = struct.unpack("<f", struct.pack("<f", LOG2E))[0]
    k(f"v_mov_b32 {t0}, {f32(LOG2E)}")
    k(f"v_mul_f32 {t1}, s48, {t0}")
    k(f"v_fma_f32 {t0}, s48, {t0}, -{t1}")
    k(f"v_mov_b32 {vD}, {f32(LOG2E - l2e_hi)}")
    k(f"v_fmac_f32 {t0}, s48, {vD}")
    k(f"v_exp_f32 {t1}, {t1}")
    k(f"v_mul_f32 {t0}, {f32(math.log(2.0))}, {t0}")
    k(f"v_fma_f32 {t1}, {t1}, {t0}, {t1}")
    k(f"v_cvt_pk_bf16_f32 {t1}, {t1}, {t1}")
    k(f"v_and_b32 {vdt}, 0xffff0000, {t1}")
    k(f"v_mov_b32 {t0}, s49")
    k(f"v_cmp_eq_u32 vcc, 0, {lane}")
    k(f"v_cndmask_b32 {vD}, 0, {t0}, vcc")
    cT = {T: V.alloc(2) for T in (1, 8, 256)}
    for T in (1, 8, 256):
        k(f"v_mul_f32 {cT[T][0]}, {f32(LOG2E * T)}, {vdt}")
        k(f"v_mul_f32 {cT[T][1]}, {f32(T / (2 * math.pi))}, {vdt}")
    wb = V.alloc(8)
    k(f"s_mul_i32 s13, s3, 8704")
    k(f"s_add_u32 s13, s13, {K1_G}")
    k(f"v_add_u32 {wb[0]}, s13, {vo4}")
    for g in range(1, 8):
        k(f"v_add_u32 {wb[g]}, {1088 * g}, {wb[0]}")
    vr = V.alloc()
    k(f"v_and_b32 {t0}, 31, {lane}")
    k(f"v_mul_u32_u24 {t0}, 272, {t0}")
    k(f"v_lshrrev_b32 {t1}, 5, {lane}")
    k(f"v_lshl_add_u32 {t0}, {t1}, 4, {t0}")
    k(f"v_add_u32 {vr}, s13, {t0}")
    gacc = V.alloc(16, 4)
    fa = [V.alloc(4, 4) for _ in range(8)]
    fb = [V.alloc(4, 4) for _ in range(8)]
    Aa, Bc, Cc = V.alloc(2), V.alloc(2), V.alloc(2)
    E = {T: V.alloc(2) for T in (1, 2, 3, 4, 6, 8, 16, 256, 512, 768, 1024)}
    tmp = [V.alloc(2) for _ in range(3)]
    mg = [V.alloc() for _ in range(3)]
    ch = [[V.alloc(2), V.alloc(2)], [V.alloc(2), V.alloc(2)]]
    pI = V.alloc(22)
    pJ = V.alloc(4)
    k(f"v_mov_b32 {pI[0]}, 0x3f80")
    k(f"v_mov_b32 {pI[21]}, 0")

    def wr2(row, a, b):
        g, m = row >> 2, row & 3
        return f"ds_write2_b32 {wb[g]}, {a}, {b} offset0:{68 * m} offset1:{68 * (m + 1)}"

    def cvtI(i, z):
        return f"v_cvt_pk_bf16_f32 {pI[i]}, {z[0]}, -{z[1]}"

    def part1(c):
        o = []
        dst = [Aa[0], Aa[1], Bc[0], Bc[1], Cc[0], Cc[1]]
        for i in range(6):
            if c == 0:
                o.append(f"v_lshlrev_b32 {dst[i]}, 16, {raw[i]}")
            else:
                o.append(f"v_and_b32 {dst[i]}, 0xffff0000, {raw[i]}")
        Ts = (1, 8, 256)
        for i, T in enumerate(Ts):
            o.append(f"v_pk_mul_f32 {tmp[i]}, {Aa}, {cT[T]}")
        for i, T in enumerate(Ts):
            o.append(f"v_fract_f32 {tmp[i][1]}, {tmp[i][1]}")
        for i, T in enumerate(Ts):
            o.append(f"v_exp_f32 {tmp[i][0]}, {tmp[i][0]}")
            o.append(f"v_cos_f32 {E[T][0]}, {tmp[i][1]}")
            o.append(f"v_sin_f32 {E[T][1]}, {tmp[i][1]}")
        o += cmul(ch[0][0], Cc, Bc)
        for i, T in enumerate(Ts):
            o.append(f"v_pk_mul_f32 {E[T]}, {E[T]}, {tmp[i]} op_sel:[0,0] op_sel_hi:[1,0]")
        return o

    def pairs(*ms):
        return [m[0] for m in ms] + [m[1] for m in ms]

    def partI():
        o = []
        o += pairs(cmul(E[2], E[1], E[1]), cmul(E[512], E[256], E[256]), cmul(E[16], E[8], E[8]), cmul(ch[1][0], ch[0][0], E[8]))
        o += [cvtI(1, E[1]), cvtI(8, E[256])]
        o += pairs(cmul(E[3], E[2], E[1]), cmul(E[4], E[2], E[2]), cmul(E[768], E[512], E[256]), cmul(E[1024], E[512], E[512]))
        o += [cvtI(2, E[2]), cvtI(12, E[512]), wr2(0, pI[0], pI[1])]
        o += pairs(cmul(tmp[0], E[4], E[1]), cmul(E[6], E[4], E[2]), cmul(tmp[1], E[4], E[3]), cmul(tmp[2], E[256], E[2]))
        o += [cvtI(3, E[3]), cvtI(4, E[4]), cvtI(14, E[768]), cvtI(16, E[1024]), wr2(2, pI[2], pI[3])]
        o += [cvtI(5, tmp[0]), cvtI(6, E[6]), cvtI(7, tmp[1]), cvtI(9, tmp[2])]
        o += pairs(cmul(tmp[0], E[256], E[4]), cmul(tmp[1], E[256], E[6]), cmul(tmp[2], E[512], E[4]))
        o += [wr2(4, pI[4], pI[5]), wr2(6, pI[6], pI[7]), wr2(8, pI[8], pI[9])]
        o += [cvtI(10, tmp[0]), cvtI(11, tmp[1]), cvtI(13, tmp[2])]
        o += pairs(cmul(tmp[0], E[768], E[4]), cmul(tmp[1], E[1024], E[256]), cmul(tmp[2], E[1024], E[512]))
        o += [wr2(10, pI[10], pI[11]), wr2(12, pI[12], pI[13])]
        o += [cvtI(15, tmp[0]), cvtI(17, tmp[1]), cvtI(18, tmp[2])]
        o += pairs(cmul(tmp[0], E[1024], E[768]), cmul(tmp[1], E[1024], E[1024]))
        o += [wr2(14, pI[14], pI[15]), wr2(16, pI[16], pI[17])]
        o += [cvtI(19, tmp[0]), cvtI(20, tmp[1])]
        o += [wr2(18, pI[18], pI[19]), wr2(20, pI[20], pI[21])]
        for q in range(8):
            o.append(f"ds_read_b128 {fa[q]}, {vr} offset:{32 * q}")
        return o

    def partJ():
        o = []
        for m in range(16):
            cur = (ch[0][m & 1], ch[1][m & 1])
            nxt = (ch[0][(m + 1) & 1], ch[1][(m + 1) & 1])
            p = pJ[2 * (m & 1):2 * (m & 1) + 2]
            if m < 15:
                o += pairs(cmul(nxt[0], cur[0], E[16]), cmul(nxt[1], cur[1], E[16]))
            o.append(f"v_cvt_pk_bf16_f32 {p[0]}, {cur[0][0]}, {cur[0][1]}")
            o.append(f"v_cvt_pk_bf16_f32 {p[1]}, {cur[1][0]}, {cur[1][1]}")
            o.append(wr2(2 * m, p[0], p[1]))
        for q in range(8):
            o.append(f"ds_read_b128 {fb[q]}, {vr} offset:{32 * q}")
        return o

    def mf(c):
        return [f"v_mfma_f32_32x32x16_bf16 {gacc}, {fa[q]}, {fb[q]}, {'0' if (c == 0 and q == 0) else gacc}" for q in range(8)]

    body = part1(0) + partI() + partJ()
    p1 = part1(1)
    pi = partI()
    nI = len(pi) - 8
    body += p1[:16] + interleave(p1[16:] + pi[:nI], mf(0)) + pi[nI:] + partJ() + mf(1)
    cps = opts.get("cps", [0, 40, 80, 120, 160, 200, 240])
    ci = 0
    for i, ins in enumerate(body):
        while ci < 7 and cps[ci] <= i:
            k.need(f"W{ci}")
            k(f"ds_add_u32 {vfl}, {vone} offset:{256 * ci}")
            ci += 1
        k(ins)
    assert ci == 7
    k(f"v_fma_f32 {gacc[0]}, {gacc[0]}, {vdt}, {vD}")
    for r in range(1, 12):
        k(f"v_mul_f32 {gacc[r]}, {gacc[r]}, {vdt}")
    k(f"v_lshlrev_b32 {t0}, 4, {lane}")
    k("s_lshl_b32 s10, s8, 1")
    k("s_add_u32 s10, s10, s9")
    k("s_mul_i32 s10, s10, 3072")
    k(f"s_add_u32 s10, s10, {KT}")
    for f in range(3):
        k(f"buffer_store_dwordx4 {gacc[4 * f:4 * f + 4]}, {t0}, {sWS}, s10 offen offset:{1024 * f}{st}")
    k.label("k1_end")
    k("s_endpgm")
    return k


def main(out, opts=None):
    opts = opts or {}
    ref = open("cdna_kernels/%s.s.ref" % NAME).read().split("\n")
    header = ""
    for line in ref:
        if line.startswith("; @launch") or line.startswith("; Override") or line.startswith("; grid="):
            continue
        if not line.startswith(";"):
            break
        header += line + "\n"
    ks = [(gen_k1(opts), 256, 512, K1_LDS)]
    try:
        from gen2 import gen_k2, gen_k3, K2_LDS, K3_LDS
        ks.append((gen_k2(opts), 256, 512, K2_LDS))
        ks.append((gen_k3(opts), 224, 512, K3_LDS))
    except ImportError:
        pass
    s = build_file(header, ks)
    open(out, "w").write(s)
    for k, g, b, lds in ks:
        print(k.name, "vgpr", k.nv, "sgpr", k.ns, "nops", k.nnops, "instrs", len(k.items), "lds", lds)


if __name__ == "__main__":
    main(sys.argv[1] if len(sys.argv) > 1 else "cdna_kernels/%s.s" % NAME)
```
